```python
import torch

def _softmax(x, axis=-1):
    return torch.softmax(x, dim=axis)
def _gelu(x):
    return torch.nn.functional.gelu(x, approximate="tanh")
def _silu(x):
    return torch.nn.functional.silu(x)
def _sigmoid(x):
    return torch.sigmoid(x)
def _layernorm(x, axis=-1, eps=1e-5):
    m = x.mean(dim=axis, keepdim=True)
    v = x.var(dim=axis, keepdim=True, unbiased=False)
    return (x - m) / torch.sqrt(v + eps)
def _scatter_add(tgt, idx, src, axis=0):
    return tgt.clone().index_add_(axis, idx, src)
def _segment_sum(src, seg, n):
    out = torch.zeros((n,) + src.shape[1:], dtype=src.dtype)
    return out.index_add_(0, seg, src)
def _pad(x, pw):
    flat = tuple(v for pair in reversed(pw) for v in pair)
    return torch.nn.functional.pad(x, flat)

kernel_name = 'recurrent_scan__ssm_conv_s4__geglu_ffn__prompt'

def setup_inputs():

    _w = (lambda a: (lambda t: t.to(torch.bfloat16) if t.is_floating_point() else t)(torch.as_tensor(a)))
    def _A_setup():
        B, L, D, N = 1, 2048, 640, 192
        A_re = -(lambda _x: torch.exp(torch.as_tensor(_x)))((lambda *s: torch.randn(*s, dtype=torch.bfloat16) * 6.4)(D, N))
        A_im = torch.pi * (lambda *s: torch.randn(*s, dtype=torch.bfloat16) * 0.05)(D, N)
        B_re = (lambda *s: torch.randn(*s, dtype=torch.bfloat16) * 0.05)(D, N)
        B_im = (lambda *s: torch.randn(*s, dtype=torch.bfloat16) * 0.05)(D, N)
        C_re = (lambda *s: torch.randn(*s, dtype=torch.bfloat16) * 0.05)(D, N)
        C_im = (lambda *s: torch.randn(*s, dtype=torch.bfloat16) * 0.05)(D, N)
        log_dt = (lambda *s: torch.randn(*s, dtype=torch.bfloat16) * 0.05)(D) * 0.5 - 4.0
        Dskip = (lambda *s: torch.randn(*s, dtype=torch.bfloat16) * 0.05)(D)
        return {
            "u": _w((lambda *s: torch.randn(*s, dtype=torch.bfloat16) * 0.05)(B, L, D)),
            "A_re": _w(A_re),
            "A_im": _w(A_im),
            "B_re": _w(B_re),
            "B_im": _w(B_im),
            "C_re": _w(C_re),
            "C_im": _w(C_im),
            "log_dt": _w(log_dt),
            "Dskip": _w(Dskip),
        }
    _A_in = _A_setup()

    def _B_setup():
        B, S, D, F = 1, 2048, 640, 1536
        return {
            "x": _w((lambda *s: torch.randn(*s, dtype=torch.bfloat16) * 0.05)(B, S, D)),
            "w_gate": _w((lambda *s: torch.randn(*s, dtype=torch.bfloat16) * 0.05)(D, F)),
            "w_up": _w((lambda *s: torch.randn(*s, dtype=torch.bfloat16) * 0.05)(D, F)),
            "w_down": _w((lambda *s: torch.randn(*s, dtype=torch.bfloat16) * 0.05)(F, D)),
        }
    _B_in = _B_setup()

    return {
        "A_u": _A_in["u"],
        "A_A_re": _A_in["A_re"],
        "A_A_im": _A_in["A_im"],
        "A_B_re": _A_in["B_re"],
        "A_B_im": _A_in["B_im"],
        "A_C_re": _A_in["C_re"],
        "A_C_im": _A_in["C_im"],
        "A_log_dt": _A_in["log_dt"],
        "A_Dskip": _A_in["Dskip"],
        "B_x": _B_in["x"],
        "B_w_gate": _B_in["w_gate"],
        "B_w_up": _B_in["w_up"],
        "B_w_down": _B_in["w_down"],
    }

def reference(A_u, A_A_re, A_A_im, A_B_re, A_B_im, A_C_re, A_C_im, A_log_dt, A_Dskip, B_x, B_w_gate, B_w_up, B_w_down):
    def _A_ref(u, A_re, A_im, B_re, B_im, C_re, C_im, log_dt, Dskip):
        Bsz, L, D = u.shape
        dt = torch.exp(log_dt)[:, None]
        A = A_re + 1j * A_im
        Bc = B_re + 1j * B_im
        Cc = C_re + 1j * C_im
        logdA = dt * A
        dB = dt * Bc
        l = (lambda x, dt: x.to(dt))(torch.arange(L), A_re.dtype)
        P = torch.exp(logdA[:, :, None] * l[None, None, :])
        K = torch.einsum("dn,dnl,dn->dl", Cc, P, dB).real
        L2 = 2 * L
        Kp = _pad(K, ((0, 0), (0, L)))
        up = (lambda x, *d: x.permute(*d))(u, 0, 2, 1)
        up = _pad(up, ((0, 0), (0, 0), (0, L)))
        Kf = (lambda x, axes=(-2,-1): torch.fft.rfft2(x.float(), dim=axes))(Kp[:, None, :], axes=(-2, -1))
        Uf = (lambda x, axes=(-2,-1): torch.fft.rfft2(x.float(), dim=axes))(up[:, :, None, :], axes=(-2, -1))
        Yf = Uf * Kf[None, :, :, :]
        y = (lambda x, s, axes=(-2,-1): torch.fft.irfft2(x, s=s, dim=axes).to(torch.bfloat16))(Yf, (1, L2), axes=(-2, -1))[:, :, 0, :L]
        y = (lambda x, *d: x.permute(*d))(y, 0, 2, 1) + u * Dskip[None, None, :]
        return y

    def _B_ref(x, w_gate, w_up, w_down):
        return (_gelu(x @ w_gate) * (x @ w_up)) @ w_down

    x = A_u
    xn = _layernorm(x, axis=-1)
    s = _A_ref(xn, A_A_re, A_A_im, A_B_re, A_B_im, A_C_re, A_C_im, A_log_dt, A_Dskip)
    g = _silu(_B_ref(xn, B_w_gate, B_w_up, B_w_down))
    return x + s * g
```

```python
import sys
def kdesc(k, vg=64, sg=64):
    return """.p2align 6
.amdhsa_kernel {k}
  .amdhsa_next_free_vgpr %d
  .amdhsa_next_free_sgpr %d
  .amdhsa_accum_offset %d
  .amdhsa_group_segment_fixed_size 0
  .amdhsa_kernarg_size 128
  .amdhsa_user_sgpr_count 2
  .amdhsa_user_sgpr_kernarg_segment_ptr 1
  .amdhsa_system_sgpr_workgroup_id_x 1
  .amdhsa_float_denorm_mode_32 3
.end_amdhsa_kernel
""".replace("{k}", k) % (vg, sg, vg)
def head(k):
    return ".globl %s\n.p2align 8\n.type %s,@function\n%s:\n" % (k, k, k)
def srd(d, slot, nbytes):
    return "    s_load_dwordx2 s[%d:%d], s[0:1], %d\n    s_mov_b32 s%d, %d\n    s_mov_b32 s%d, 0x20000\n" % (d, d+1, slot*8, d+2, nbytes, d+3)
WS_XN = 0; WS_K = 4<<20; WS_S = 12<<20; WS_H = 16<<20
def rbf(dst, src):
    return "    v_cvt_pk_bf16_f32 v%d, v%d, v%d\n    v_lshlrev_b32 v%d, 16, v%d\n" % (dst, src, src, dst, dst)
def wave_sum(r, t):
    s = ""
    for off in [0x041F, 0x081F, 0x101F, 0x201F, 0x401F]:
        s += "    ds_swizzle_b32 v%d, v%d offset:%d\n    s_waitcnt lgkmcnt(0)\n    v_add_f32 v%d, v%d, v%d\n" % (t, r, off, r, r, t)
    s += "    s_nop 1\n    v_readlane_b32 s30, v%d, 0\n    v_readlane_b32 s31, v%d, 32\n    s_nop 3\n    v_mov_b32 v%d, s30\n    v_add_f32 v%d, s31, v%d\n" % (r, r, r, r, r)
    return s
def k_ln():
    s = head("ln_kernel")
    s += "    s_cmp_ge_u32 s2, 2048\n    s_cbranch_scc1 ln_end\n"
    s += srd(4, 0, 2621440) + srd(8, 15, 1<<28) + "    s_waitcnt lgkmcnt(0)\n"
    s += "    s_mul_i32 s3, s2, 1280\n    v_lshlrev_b32 v1, 2, v0\n"
    for i in range(5): s += "    buffer_load_dword v%d, v1, s[4:7], s3 offen offset:%d\n" % (2+i, 256*i)
    s += "    s_waitcnt vmcnt(0)\n    v_mov_b32 v30, 0\n"
    for i in range(5):
        s += "    v_lshlrev_b32 v%d, 16, v%d\n    v_and_b32 v%d, 0xffff0000, v%d\n" % (10+2*i, 2+i, 11+2*i, 2+i)
    for i in range(10): s += "    v_add_f32 v30, v30, v%d\n" % (10+i)
    s += wave_sum(30, 31)
    s += "    v_mul_f32 v30, 0x3acccccd, v30\n"
    s += "    v_mov_b32 v32, 0\n"
    for i in range(10): s += "    v_sub_f32 v33, v%d, v30\n    v_fmac_f32 v32, v33, v33\n" % (10+i)
    s += wave_sum(32, 31)
    s += "    v_mul_f32 v32, 0x3acccccd, v32\n"
    s += rbf(30, 30) + rbf(32, 32)
    s += "    v_add_f32 v32, 0x3727c5ac, v32\n" + rbf(32, 32)
    s += "    v_sqrt_f32 v32, v32\n    s_nop 0\n" + rbf(32, 32)
    s += "    v_rcp_f32 v32, v32\n    s_nop 0\n"
    for i in range(10):
        s += "    v_sub_f32 v%d, v%d, v30\n" % (10+i, 10+i) + rbf(10+i, 10+i) + "    v_mul_f32 v%d, v%d, v32\n" % (10+i, 10+i)
    for i in range(5):
        s += "    v_cvt_pk_bf16_f32 v%d, v%d, v%d\n" % (2+i, 10+2*i, 11+2*i)
        s += "    buffer_store_dword v%d, v1, s[8:11], s3 offen offset:%d\n" % (2+i, 256*i)
    s += "    s_waitcnt vmcnt(0)\nln_end:\n    s_endpgm\n"
    return s
def k_kgen():
    s = head("kgen_kernel")
    s += "    s_cmp_ge_u32 s2, 640\n    s_cbranch_scc1 kgen_end\n"
    for i in range(6): s += srd(8+4*i, 1+i, 245760)
    s += srd(32, 7, 1280) + srd(36, 15, 1<<28) + "    s_waitcnt lgkmcnt(0)\n"
    s += "    s_mul_i32 s3, s2, 384\n    v_lshlrev_b32 v1, 1, v0\n    v_min_u32 v1, 382, v1\n"
    for i in range(6): s += "    buffer_load_ushort v%d, v1, s[%d:%d], s3 offen\n" % (2+i, 8+4*i, 11+4*i)
    s += "    s_lshl_b32 s4, s2, 1\n    v_mov_b32 v9, 0\n    buffer_load_ushort v8, v9, s[32:35], s4 offen\n    s_waitcnt vmcnt(0)\n"
    for i in range(7): s += "    v_lshlrev_b32 v%d, 16, v%d\n" % (2+i, 2+i)
    s += "    v_mul_f32 v8, 0x3fb8aa3b, v8\n    v_exp_f32 v8, v8\n    s_nop 0\n" + rbf(8, 8)
    s += "    v_mul_f32 v10, v8, v2\n    v_mul_f32 v11, v8, v3\n"
    s += "    v_mul_f32 v10, 0x3fb8aa3b, v10\n    v_mul_f32 v11, 0.15915494, v11\n"
    s += "    v_mul_f32 v4, v8, v4\n    v_mul_f32 v5, v8, v5\n"
    s += "    v_mul_f32 v12, v6, v4\n    v_fma_f32 v12, -v7, v5, v12\n"
    s += "    v_mul_f32 v13, v6, v5\n    v_fma_f32 v13, v7, v4, v13\n"
    s += "    v_lshlrev_b32 v14, 4, v0\n    ds_write_b128 v14, v[10:13]\n    s_waitcnt lgkmcnt(0)\n    s_barrier\n"
    for i in range(8):
        s += "    v_add_u32 v%d, %d, v0\n    v_cvt_f32_u32 v%d, v%d\n" % (20+i, 256*i, 20+i, 20+i) + rbf(20+i, 20+i) + "    v_mov_b32 v%d, 0\n" % (30+i)
    s += "    s_mov_b32 s5, 0\n    v_mov_b32 v14, 0\nkgen_loop:\n    ds_read_b128 v[10:13], v14\n    s_waitcnt lgkmcnt(0)\n"
    for i in range(8):
        s += "    v_mul_f32 v40, v10, v%d\n    v_mul_f32 v41, v11, v%d\n    v_exp_f32 v40, v40\n    v_fract_f32 v41, v41\n    v_cos_f32 v42, v41\n    v_sin_f32 v43, v41\n    s_nop 0\n" % (20+i, 20+i)
        s += "    v_mul_f32 v42, v42, v12\n    v_fma_f32 v42, -v43, v13, v42\n    v_fmac_f32 v%d, v40, v42\n" % (30+i)
    s += "    v_add_u32 v14, 16, v14\n    s_add_u32 s5, s5, 1\n    s_cmp_lt_u32 s5, 192\n    s_cbranch_scc1 kgen_loop\n"
    s += "    v_mul_u32_u24 v1, 2560, v0\n    s_lshl_b32 s4, s2, 2\n    s_add_u32 s4, s4, %d\n" % WS_K
    for i in range(8):
        s += "    buffer_store_dword v%d, v1, s[36:39], s4 offen\n    s_add_u32 s4, s4, %d\n" % (30+i, 256*2560)
    s += "    s_waitcnt vmcnt(0)\nkgen_end:\n    s_endpgm\n"
    return s
def k_conv():
    s = head("conv_kernel")
    s += "    s_cmp_ge_u32 s2, 20480\n    s_cbranch_scc1 conv_end\n"
    s += srd(4, 8, 1280) + srd(8, 15, 1<<28) + "    s_waitcnt lgkmcnt(0)\n"
    s += "    s_mov_b32 s12, 429496730\n    s_mul_hi_u32 s13, s2, s12\n    s_mul_i32 s14, s13, 10\n    s_sub_u32 s14, s2, s14\n"
    s += "    s_lshl_b32 s14, s14, 6\n    v_add_u32 v1, s14, v0\n    v_lshlrev_b32 v2, 1, v1\n    v_lshlrev_b32 v3, 2, v1\n"
    s += "    s_mul_i32 s15, s13, 1280\n    s_mov_b32 s18, s15\n    s_mov_b32 s16, %d\n    s_mov_b32 s17, 0\n    v_mov_b32 v10, 0\n" % WS_K
    s += "conv_loop:\n    buffer_load_ushort v4, v2, s[8:11], s15 offen\n    buffer_load_dword v5, v3, s[8:11], s16 offen\n    s_waitcnt vmcnt(0)\n"
    s += "    v_lshlrev_b32 v4, 16, v4\n    v_fmac_f32 v10, v4, v5\n    s_sub_u32 s15, s15, 1280\n    s_add_u32 s16, s16, 2560\n    s_add_u32 s17, s17, 1\n    s_cmp_le_u32 s17, s13\n    s_cbranch_scc1 conv_loop\n"
    s += "    buffer_load_ushort v4, v2, s[8:11], s18 offen\n    buffer_load_ushort v5, v2, s[4:7], 0 offen\n    s_waitcnt vmcnt(0)\n"
    s += "    v_lshlrev_b32 v4, 16, v4\n    v_lshlrev_b32 v5, 16, v5\n    v_mul_f32 v4, v4, v5\n" + rbf(4, 4) + rbf(10, 10)
    s += "    v_add_f32 v10, v10, v4\n    v_cvt_pk_bf16_f32 v10, v10, v10\n    s_add_u32 s18, s18, %d\n    buffer_store_short v10, v2, s[8:11], s18 offen\n" % WS_S
    s += "    s_waitcnt vmcnt(0)\nconv_end:\n    s_endpgm\n"
    return s
def k_g1():
    s = head("g1_kernel")
    s += "    s_cmp_ge_u32 s2, 6144\n    s_cbranch_scc1 g1_end\n"
    s += srd(4, 10, 1966080) + srd(20, 11, 1966080) + srd(8, 15, 1<<28) + "    s_waitcnt lgkmcnt(0)\n"
    s += "    s_mov_b32 s12, 1431655766\n    s_mul_hi_u32 s13, s2, s12\n    s_mul_i32 s14, s13, 3\n    s_sub_u32 s14, s2, s14\n"
    s += "    s_lshl_b32 s14, s14, 8\n    v_add_u32 v1, s14, v0\n    v_lshlrev_b32 v2, 2, v1\n    v_mov_b32 v3, 0\n"
    s += "    s_mul_i32 s15, s13, 1280\n    s_mov_b32 s16, 0\n    s_mov_b32 s17, 0\n"
    for i in range(4): s += "    v_mov_b32 v%d, 0\n" % (10+i)
    s += "g1_loop:\n    buffer_load_ushort v4, v3, s[8:11], s15 offen\n    buffer_load_dword v5, v2, s[4:7], s16 offen\n    buffer_load_dword v6, v2, s[20:23], s16 offen\n    s_waitcnt vmcnt(0)\n"
    s += "    v_lshlrev_b32 v4, 16, v4\n    v_lshlrev_b32 v7, 16, v5\n    v_and_b32 v5, 0xffff0000, v5\n    v_lshlrev_b32 v8, 16, v6\n    v_and_b32 v6, 0xffff0000, v6\n"
    s += "    v_fmac_f32 v10, v4, v7\n    v_fmac_f32 v11, v4, v5\n    v_fmac_f32 v12, v4, v8\n    v_fmac_f32 v13, v4, v6\n"
    s += "    s_add_u32 s15, s15, 2\n    s_add_u32 s16, s16, 3072\n    s_add_u32 s17, s17, 1\n    s_cmp_lt_u32 s17, 640\n    s_cbranch_scc1 g1_loop\n"
    for i in range(4): s += rbf(10+i, 10+i)
    for i in range(2):
        g = 10+i
        s += "    v_mul_f32 v20, v%d, v%d\n    v_mov_b32 v21, 0x3d372713\n    v_fma_f32 v20, v20, v21, 1.0\n    v_mul_f32 v20, v20, v%d\n" % (g, g, g)
        s += "    v_mul_f32 v20, 0xc0135761, v20\n    v_exp_f32 v20, v20\n    s_nop 0\n    v_add_f32 v20, 1.0, v20\n    v_rcp_f32 v20, v20\n    s_nop 0\n    v_mul_f32 v%d, v%d, v20\n" % (g, g)
        s += rbf(g, g) + "    v_mul_f32 v%d, v%d, v%d\n" % (g, g, 12+i)
    s += "    v_cvt_pk_bf16_f32 v10, v10, v11\n    s_mul_i32 s15, s13, 3072\n    s_add_u32 s15, s15, %d\n    buffer_store_dword v10, v2, s[8:11], s15 offen\n" % WS_H
    s += "    s_waitcnt vmcnt(0)\ng1_end:\n    s_endpgm\n"
    return s
def k_g2():
    s = head("g2_kernel")
    s += "    s_cmp_ge_u32 s2, 10240\n    s_cbranch_scc1 g2_end\n"
    s += srd(4, 12, 1966080) + srd(20, 0, 2621440) + srd(24, 13, 2621440) + srd(8, 15, 1<<28) + "    s_waitcnt lgkmcnt(0)\n"
    s += "    s_mov_b32 s12, 858993460\n    s_mul_hi_u32 s13, s2, s12\n    s_mul_i32 s14, s13, 5\n    s_sub_u32 s14, s2, s14\n"
    s += "    s_lshl_b32 s14, s14, 6\n    v_add_u32 v1, s14, v0\n    v_lshlrev_b32 v2, 2, v1\n    v_mov_b32 v3, 0\n"
    s += "    s_mul_i32 s15, s13, 3072\n    s_add_u32 s15, s15, %d\n    s_mov_b32 s16, 0\n    s_mov_b32 s17, 0\n    v_mov_b32 v10, 0\n    v_mov_b32 v11, 0\n" % WS_H
    s += "g2_loop:\n    buffer_load_ushort v4, v3, s[8:11], s15 offen\n    buffer_load_dword v5, v2, s[4:7], s16 offen\n    s_waitcnt vmcnt(0)\n"
    s += "    v_lshlrev_b32 v4, 16, v4\n    v_lshlrev_b32 v7, 16, v5\n    v_and_b32 v5, 0xffff0000, v5\n    v_fmac_f32 v10, v4, v7\n    v_fmac_f32 v11, v4, v5\n"
    s += "    s_add_u32 s15, s15, 2\n    s_add_u32 s16, s16, 1280\n    s_add_u32 s17, s17, 1\n    s_cmp_lt_u32 s17, 1536\n    s_cbranch_scc1 g2_loop\n"
    s += "    s_mul_i32 s15, s13, 1280\n    s_add_u32 s16, s15, %d\n    buffer_load_dword v4, v2, s[20:23], s15 offen\n    buffer_load_dword v5, v2, s[8:11], s16 offen\n    s_waitcnt vmcnt(0)\n" % WS_S
    s += "    v_lshlrev_b32 v12, 16, v4\n    v_and_b32 v13, 0xffff0000, v4\n    v_lshlrev_b32 v14, 16, v5\n    v_and_b32 v15, 0xffff0000, v5\n"
    for i in range(2):
        g = 10+i
        s += rbf(g, g)
        s += "    v_mul_f32 v20, 0xbfb8aa3b, v%d\n    v_exp_f32 v20, v20\n    s_nop 0\n    v_add_f32 v20, 1.0, v20\n    v_rcp_f32 v20, v20\n    s_nop 0\n    v_mul_f32 v%d, v%d, v20\n" % (g, g, g)
        s += rbf(g, g) + "    v_mul_f32 v%d, v%d, v%d\n" % (g, g, 14+i) + rbf(g, g) + "    v_add_f32 v%d, v%d, v%d\n" % (g, g, 12+i)
    s += "    v_cvt_pk_bf16_f32 v10, v10, v11\n    buffer_store_dword v10, v2, s[24:27], s15 offen\n"
    s += "    s_waitcnt vmcnt(0)\ng2_end:\n    s_endpgm\n"
    return s
def k_empty():
    return head("empty_kernel") + "    s_endpgm\n"
def k_chase(slot, nbytes, n, stride, flags=""):
    s = head("chase_kernel")
    s += "    s_cmp_ge_u32 s2, 1\n    s_cbranch_scc1 chase_end\n" + srd(4, slot, nbytes) + "    s_waitcnt lgkmcnt(0)\n    v_mov_b32 v1, 0\n    s_mov_b32 s8, 0\n    s_mov_b32 s9, 0\n"
    s += "chase_loop:\n    buffer_load_dword v2, v1, s[4:7], s8 offen %s\n    s_waitcnt vmcnt(0)\n    s_add_u32 s8, s8, %d\n    s_add_u32 s9, s9, 1\n    s_cmp_lt_u32 s9, %d\n    s_cbranch_scc1 chase_loop\n" % (flags, stride, n)
    s += "chase_end:\n    s_endpgm\n"
    return s
def k_code(n):
    s = head("code_kernel")
    s += "    v_mov_b32 v2, 1\n    s_nop 0\n"
    for i in range(n): s += "    v_add3_u32 v%d, v%d, v2, v2\n" % (3 + i % 4, 3 + i % 4)
    return s + "    s_endpgm\n"
def build(pre=[], post=[], extra=""):
    base = [("ln_kernel", 2048, 64, 0), ("kgen_kernel", 640, 256, 4096), ("conv_kernel", 20480, 64, 0), ("g1_kernel", 6144, 256, 0), ("g2_kernel", 10240, 64, 0)]
    ls = pre + base + post
    s = "".join("; @launch kernel=%s grid=(%d,1,1) block=(%d,1,1) lds=%d\n" % l for l in ls)
    s += '.amdgcn_target "amdgcn-amd-amdhsa--gfx950"\n.text\n'
    s += k_ln() + k_kgen() + k_conv() + k_g1() + k_g2() + extra
    s += '.section .rodata,"a"\n'
    for k in dict.fromkeys(l[0] for l in ls): s += kdesc(k)
    return s
if __name__ == "__main__":
    open("n_base.s", "w").write(build())
    E = ("empty_kernel", 256, 256, 0)
    open("n_pre100.s", "w").write(build(pre=[E]*100, extra=k_empty()))
    open("n_post100.s", "w").write(build(post=[E]*100, extra=k_empty()))
    open("n_chase.s", "w").write(build(pre=[("chase_kernel", 1, 64, 0)], extra=k_chase(9, 2621440, 600, 4096)))
    open("n_chase_w.s", "w").write(build(pre=[("chase_kernel", 1, 64, 0)], extra=k_chase(12, 1966080, 600, 3200)))
    open("n_code.s", "w").write(build(pre=[("code_kernel", 256, 64, 0)], extra=k_code(24000)))
```
